```python
import torch

def _softmax(x, axis=-1):
    return torch.softmax(x, dim=axis)
def _gelu(x):
    return torch.nn.functional.gelu(x, approximate="tanh")
def _silu(x):
    return torch.nn.functional.silu(x)
def _sigmoid(x):
    return torch.sigmoid(x)
def _layernorm(x, axis=-1, eps=1e-5):
    m = x.mean(dim=axis, keepdim=True)
    v = x.var(dim=axis, keepdim=True, unbiased=False)
    return (x - m) / torch.sqrt(v + eps)
def _scatter_add(tgt, idx, src, axis=0):
    return tgt.clone().index_add_(axis, idx, src)
def _segment_sum(src, seg, n):
    out = torch.zeros((n,) + src.shape[1:], dtype=src.dtype)
    return out.index_add_(0, seg, src)
def _pad(x, pw):
    flat = tuple(v for pair in reversed(pw) for v in pair)
    return torch.nn.functional.pad(x, flat)

kernel_name = 'concat_heads__mha_block_cached__mha_block_cached__near_ridge'

def setup_inputs():

    _w = (lambda a: (lambda t: t.to(torch.bfloat16) if t.is_floating_point() else t)(torch.as_tensor(a)))
    def _A_setup():
        B, Sq, D = 8, 240, 576
        H, Sk, Dh = 32, 1024, 128
        return {
            "x": _w((lambda *s: torch.randn(*s, dtype=torch.bfloat16) * 0.8)(B, Sq, D)),
            "k_cache": _w((lambda *s: torch.randn(*s, dtype=torch.bfloat16) * 0.8)(B, H, Sk, Dh)),
            "v_cache": _w((lambda *s: torch.randn(*s, dtype=torch.bfloat16) * 0.05)(B, H, Sk, Dh)),
            "wq": _w((lambda *s: torch.randn(*s, dtype=torch.bfloat16) * 0.8)(D, H * Dh) * (D ** -0.5)),
            "wo": _w((lambda *s: torch.randn(*s, dtype=torch.bfloat16) * 0.05)(H * Dh, D) * ((H * Dh) ** -0.5)),
        }
    _A_in = _A_setup()

    def _B_setup():
        B, Sq, D = 8, 240, 576
        H, Sk, Dh = 32, 1024, 128
        return {
            "x": _w((lambda *s: torch.randn(*s, dtype=torch.bfloat16) * 0.8)(B, Sq, D)),
            "k_cache": _w((lambda *s: torch.randn(*s, dtype=torch.bfloat16) * 0.8)(B, H, Sk, Dh)),
            "v_cache": _w((lambda *s: torch.randn(*s, dtype=torch.bfloat16) * 0.05)(B, H, Sk, Dh)),
            "wq": _w((lambda *s: torch.randn(*s, dtype=torch.bfloat16) * 0.8)(D, H * Dh) * (D ** -0.5)),
            "wo": _w((lambda *s: torch.randn(*s, dtype=torch.bfloat16) * 0.05)(H * Dh, D) * ((H * Dh) ** -0.5)),
        }
    _B_in = _B_setup()

    return {
        "A_x": _A_in["x"],
        "A_k_cache": _A_in["k_cache"],
        "A_v_cache": _A_in["v_cache"],
        "A_wq": _A_in["wq"],
        "A_wo": _A_in["wo"],
        "B_x": _B_in["x"],
        "B_k_cache": _B_in["k_cache"],
        "B_v_cache": _B_in["v_cache"],
        "B_wq": _B_in["wq"],
        "B_wo": _B_in["wo"],
    }

def reference(A_x, A_k_cache, A_v_cache, A_wq, A_wo, B_x, B_k_cache, B_v_cache, B_wq, B_wo):
    def _A_ref(x, k_cache, v_cache, wq, wo):
        B, Sq, D = x.shape
        H, Dh = 32, 128
        q = (lambda x, *d: x.permute(*d))((x @ wq).reshape(B, Sq, H, Dh), 0, 2, 1, 3)
        scores = torch.einsum("bhqd,bhkd->bhqk", q, k_cache) * (Dh ** -0.5)
        p = _softmax(scores, axis=-1)
        o = torch.einsum("bhqk,bhkd->bhqd", p, v_cache)
        return (lambda x, *d: x.permute(*d))(o, 0, 2, 1, 3).reshape(B, Sq, H * Dh) @ wo

    def _B_ref(x, k_cache, v_cache, wq, wo):
        B, Sq, D = x.shape
        H, Dh = 32, 128
        q = (lambda x, *d: x.permute(*d))((x @ wq).reshape(B, Sq, H, Dh), 0, 2, 1, 3)
        scores = torch.einsum("bhqd,bhkd->bhqk", q, k_cache) * (Dh ** -0.5)
        p = _softmax(scores, axis=-1)
        o = torch.einsum("bhqk,bhkd->bhqd", p, v_cache)
        return (lambda x, *d: x.permute(*d))(o, 0, 2, 1, 3).reshape(B, Sq, H * Dh) @ wo

    a = _A_ref(A_x, A_k_cache, A_v_cache, A_wq, A_wo)
    b = _B_ref(B_x, B_k_cache, B_v_cache, B_wq, B_wo)
    return torch.concatenate([a, b], axis=-1)
```

```python
KNAME = "concat_heads__mha_block_cached__mha_block_cached__near_ridge_kernel"

class Asm:
    def __init__(self):
        self.lines = []
    def __call__(self, s):
        for l in s.strip("\n").split("\n"):
            self.lines.append("    " + l.strip() if not l.strip().endswith(":") else l.strip())
    def label(self, name):
        self.lines.append(name + ":")
    def raw(self, s):
        self.lines.append(s)
    def text(self):
        return "\n".join(self.lines) + "\n"

def vr(a, n=1):
    return f"v{a}" if n == 1 else f"v[{a}:{a+n-1}]"
def ar(a, n=1):
    return f"a{a}" if n == 1 else f"a[{a}:{a+n-1}]"
def sr(a, n=1):
    return f"s{a}" if n == 1 else f"s[{a}:{a+n-1}]"

def kernel_header(name):
    return f""".globl {name}
.p2align 8
.type {name},@function
{name}:
"""

def kernel_desc(name, vgpr=512, accum=256, sgpr=102):
    return f""".amdhsa_kernel {name}
  .amdhsa_next_free_vgpr {vgpr}
  .amdhsa_next_free_sgpr {sgpr}
  .amdhsa_accum_offset {accum}
  .amdhsa_group_segment_fixed_size 0
  .amdhsa_kernarg_size 104
  .amdhsa_user_sgpr_count 2
  .amdhsa_user_sgpr_kernarg_segment_ptr 1
  .amdhsa_system_sgpr_workgroup_id_x 1
.end_amdhsa_kernel
"""

def whole_file(launch_lines, kernels):
    s = "".join(l + "\n" for l in launch_lines)
    s += '.amdgcn_target "amdgcn-amd-amdhsa--gfx950"\n.text\n'
    for (name, body, vg, ac, sg) in kernels:
        s += kernel_header(name) + body
    s += '.section .rodata,"a"\n'
    for (name, body, vg, ac, sg) in kernels:
        s += ".p2align 6\n" + kernel_desc(name, vg, ac, sg)
    return s
```

```python
import re

def expand(op):
    op = op.strip()
    neg = op.lstrip('-')
    if neg.startswith('abs(') : neg = neg[4:-1]
    if neg.startswith('|'): neg = neg.strip('|')
    m = re.fullmatch(r'([vas])\[(\d+):(\d+)\]', neg)
    if m: return {f"{m.group(1)}{i}" for i in range(int(m.group(2)), int(m.group(3)) + 1)}
    m = re.fullmatch(r'([vas])(\d+)', neg)
    if m: return {neg}
    if neg in ('vcc', 'exec', 'm0', 'scc'): return {neg}
    if neg in ('vcc_lo', 'vcc_hi'): return {'vcc'}
    return set()

TRANS = ('v_exp_f32', 'v_rcp_f32', 'v_log_f32', 'v_rsq_f32', 'v_sqrt_f32')

class I:
    __slots__ = ('txt', 'kind', 'rd', 'wr', 'tag', 'cost', 'n', 'srcc', 'ab', 'target', 'note')
    def __init__(self, txt, tag=None, kind=None):
        self.txt = txt.strip(); self.tag = tag; self.n = None; self.srcc = set(); self.ab = set(); self.target = None; self.note = None
        body = self.txt.split(';')[0].split('//')[0].strip()
        parts = body.split(None, 1)
        op = parts[0] if parts else ''
        ops = []
        if len(parts) > 1:
            raw = parts[1]
            ops = [x.strip() for x in raw.split(',')]
            if ops:
                last = ops[-1].split()
                ops[-1] = last[0] if last else ''
        self.rd = set(); self.wr = set(); self.cost = 4
        k = kind
        if k is None:
            if body.endswith(':'): k = 'label'
            elif op.startswith('.'): k = 'dir'
            elif op.startswith('v_mfma'): k = 'mfma'
            elif op.startswith('ds_'): k = 'lds'
            elif op.startswith('buffer_') or op.startswith('global_'): k = 'vmem'
            elif op == 's_waitcnt': k = 'wait'
            elif op == 's_barrier': k = 'bar'
            elif op == 's_nop': k = 'nop'
            elif op.startswith('s_cbranch') or op == 's_branch' or op == 's_endpgm' or op.startswith('s_setpc') or op.startswith('s_swappc'): k = 'br'
            elif op.startswith('s_load') or op.startswith('s_mem'): k = 'smem'
            elif op.startswith('s_'): k = 'salu'
            elif op.replace('_e32', '').replace('_e64', '') in TRANS: k = 'trans'
            elif op.startswith('v_'): k = 'valu'
            else: raise ValueError(txt)
        self.kind = k
        E = [expand(o) for o in ops]
        if k == 'mfma':
            self.wr = E[0]; self.ab = E[1] | E[2]; self.srcc = E[3]; self.rd = self.ab | self.srcc
        elif k == 'lds':
            if op.startswith('ds_read') or op.startswith('ds_bpermute') or op.startswith('ds_swizzle'):
                self.wr = E[0]; self.rd = set().union(*E[1:])
            else:
                self.rd = set().union(*E)
        elif k == 'vmem':
            if ' lds' in body or 'load_lds' in op:
                self.rd = set().union(*E) | {'m0'}
            elif 'store' in op or ('atomic' in op and 'sc0' not in body):
                self.rd = set().union(*E)
            else:
                self.wr = E[0]; self.rd = set().union(*E[1:])
                if 'd16' in op: self.rd |= E[0]
        elif k in ('valu', 'trans'):
            if k == 'trans': self.cost = 8
            if op.startswith('v_cmp'):
                self.wr = E[0]; self.rd = set().union(*E[1:])
            elif op.startswith('v_permlane') and 'swap' in op:
                self.wr = E[0] | E[1]; self.rd = E[0] | E[1]
            elif op.startswith('v_add_co') or op.startswith('v_addc_co'):
                self.wr = E[0] | E[1]; self.rd = set().union(*E[2:])
            else:
                self.wr = E[0]; self.rd = set().union(*E[1:]) if len(E) > 1 else set()
                if op.startswith('v_fmac') or op.startswith('v_dot2c'): self.rd |= E[0]
                if op.startswith('v_cndmask') and len(ops) == 3: self.rd |= {'vcc'}
        elif k == 'salu':
            if op.startswith('s_cmp') or op.startswith('s_bitcmp'):
                self.rd = set().union(*E); self.wr = {'scc'}
            elif op in ('s_setprio', 's_sleep'):
                pass
            else:
                self.wr = E[0] | ({'scc'} if not op.startswith('s_mov') and not op.startswith('s_cselect') and not op.startswith('s_mul') else set())
                self.rd = set().union(*E[1:]) if len(E) > 1 else set()
                if 'saveexec' in op: self.wr |= {'exec'}; self.rd |= {'exec'}
                if op.startswith('s_cselect') or op.startswith('s_addc') or op.startswith('s_subb'): self.rd |= {'scc'}
        elif k == 'smem':
            self.wr = E[0]; self.rd = set().union(*E[1:]) if len(E) > 1 else set()
        elif k == 'nop':
            self.n = int(ops[0], 0) + 1
        elif k == 'br':
            if ops and not op.startswith('s_setpc') and not op.startswith('s_swappc'): self.target = ops[0]
    def __repr__(self): return self.txt

class WaitV(I):
    def __init__(self, *tags):
        I.__init__(self, "s_waitcnt vmcnt(0)")
        self.kind = 'waitv'; self.tag = tags; self.n = 63
class WaitL(I):
    def __init__(self, n=15):
        I.__init__(self, "s_waitcnt lgkmcnt(0)")
        self.kind = 'waitl'; self.n = n

class WaitLT(I):
    def __init__(self, tag):
        I.__init__(self, "s_waitcnt lgkmcnt(0)")
        self.kind = 'waitlt'; self.tag = tag; self.n = 15

def mk(x, tag=None):
    if isinstance(x, I): return x
    return I(x, tag)

class Prog:
    def __init__(self):
        self.code = []
    def __call__(self, s, tag=None):
        if isinstance(s, I): self.code.append(s); return s
        if isinstance(s, (list, tuple)):
            for x in s: self(x, tag)
            return
        r = None
        for l in s.strip("\n").split("\n"):
            l = l.strip()
            if not l or l.startswith(';'): continue
            r = I(l, tag); self.code.append(r)
        return r
    def label(self, n): self.code.append(I(n + ":"))

    def trace(self, plan, start=None, limit=2000000):
        lab = {c.txt[:-1]: i for i, c in enumerate(self.code) if c.kind == 'label'}
        plan = {k: list(v) for k, v in plan.items()}
        i = lab[start] if start else 0; out = []
        while i < len(self.code) and len(out) < limit:
            c = self.code[i]; out.append(i)
            if c.kind == 'br':
                op = c.txt.split()[0]
                if op == 's_endpgm': break
                if op == 's_branch': i = lab[c.target]; continue
                key = c.note or c.target
                taken = plan[key].pop(0) if key in plan and plan[key] else False
                if taken: i = lab[c.target]; continue
            i += 1
        return out

    def resolve(self, plans):
        for it in range(20):
            changed = False
            for plan, start in plans:
                changed |= self._resolve_once(self.trace(plan, start))
            if not changed: break
        else:
            raise RuntimeError("no fixpoint")
        for c in self.code:
            if c.kind == 'waitv': c.txt = f"s_waitcnt vmcnt({c.n})"
            if c.kind in ('waitl', 'waitlt'): c.txt = f"s_waitcnt lgkmcnt({c.n})"

    def _resolve_once(self, tr):
        code = self.code
        lq = []; vq = []; vdone = 0; vregs = []
        last_mfma = None
        total_l = 0
        ins = {}
        changed = False
        def apply_l(n):
            nonlocal lq
            if n < len(lq): lq = lq[len(lq) - n:] if n else []
        for tp, ci in enumerate(tr):
            c = code[ci]; k = c.kind
            if ci in ins: apply_l(ins[ci].n)
            if k == 'wait':
                m = re.search(r'lgkmcnt\((\d+)\)', c.txt)
                if m: apply_l(int(m.group(1)))
                m = re.search(r'vmcnt\((\d+)\)', c.txt)
                if m: vdone = max(vdone, len(vq) - int(m.group(1)))
                continue
            if k == 'waitl':
                apply_l(c.n); continue
            if k == 'waitlt':
                for j in range(len(lq) - 1, -1, -1):
                    if lq[j][0].tag == c.tag:
                        n = len(lq) - 1 - j
                        if n < c.n: c.n = n; changed = True
                        break
                apply_l(c.n); continue
            if k == 'waitv':
                need = -1
                for j in range(len(vq) - 1, -1, -1):
                    if vq[j] in c.tag: need = j; break
                if need >= 0:
                    n = len(vq) - 1 - need
                    if n < c.n: c.n = n; changed = True
                vdone = max(vdone, len(vq) - c.n)
                continue
            if k == 'smem': continue
            touched = c.rd | c.wr
            idx = -1
            for j, (o, seq) in enumerate(lq):
                if o.wr & touched: idx = j
            if idx >= 0:
                seq_needed = lq[idx][1]
                at = ci; n = len(lq) - 1 - idx
                if k == 'mfma' and last_mfma is not None and last_mfma[1] > seq_needed and last_mfma[2]:
                    at = last_mfma[0] + 1; n = last_mfma[1] - 1 - seq_needed
                n = min(n, 15)
                w = None
                if code[at].kind == 'waitl': w = code[at]
                elif at == ci and at > 0 and code[at - 1].kind == 'waitl': w = code[at - 1]
                elif at in ins: w = ins[at]
                if w is None:
                    ins[at] = WaitL(n)
                else:
                    w.n = min(w.n, n)
                changed = True
                lq = lq[idx + 1:]
            for (j, regs) in vregs:
                if j >= vdone and regs & touched and not (c.tag == 'PF'):
                    if changed: break
                    raise RuntimeError(f"vmem load result used without wait: {c.txt}")
            if k == 'lds':
                lq.append((c, total_l)); total_l += 1
            if k == 'vmem':
                vq.append(c.tag)
                if c.wr: vregs.append((len(vq) - 1, c.wr))
                vregs = [(j, r) for (j, r) in vregs if j >= vdone]
            if k == 'mfma': last_mfma = [ci, total_l, True]
            if k in ('label', 'br', 'bar') and last_mfma: last_mfma[2] = False
        for at in sorted(ins, reverse=True):
            code.insert(at, ins[at])
        return changed

    def check(self, plans, passes=4):
        errs = []
        for plan, start in plans:
            tr = self.trace(plan, start)
            seq = [self.code[i] for i in tr if self.code[i].kind not in ('label', 'dir')]
            pos = []; p = 0
            for c in seq:
                pos.append(p); p += c.n if c.kind == 'nop' else 1
            W = 24
            for i, c in enumerate(seq):
                for j in range(i - 1, max(-1, i - W), -1):
                    o = seq[j]
                    d = pos[i] - pos[j] - (o.n if o.kind == 'nop' else 1)
                    if d >= 20: break
                    need = 0; why = ''
                    isv = lambda x: x.kind in ('valu', 'trans')
                    v = lambda s: {r for r in s if r[0] in 'va' and r != 'vcc'}
                    sg = lambda s: {r for r in s if r[0] == 's' and r != 'scc' or r == 'vcc'}
                    opc = c.txt.split()[0]
                    if isv(o) and c.kind == 'mfma' and v(o.wr) & c.rd: need, why = 2, 'valu->mfma'
                    if o.kind == 'mfma':
                        big = '32x32' in o.txt
                        if c.kind == 'mfma':
                            if o.wr & c.ab: need, why = (12 if big else 8), 'mfmaD->AB'
                            elif o.wr & c.srcc and o.wr != c.srcc: need, why = (10 if big else 6), 'mfmaD->C partial'
                            elif o.wr & c.wr and o.wr != c.srcc: need, why = (10 if big else 6), 'mfmaD->D waw'
                        elif (isv(c) or c.kind in ('lds', 'vmem')) and o.wr & (c.rd | c.wr): need, why = (12 if big else 8), 'mfmaD->valu/mem'
                        if isv(c) and o.srcc & c.wr: need, why = max(need, 7 if big else 3), why or 'mfmaC war'
                    if o.kind == 'trans' and c.kind == 'valu' and o.wr & c.rd: need, why = max(need, 1), 'trans->valu'
                    if o.kind == 'trans' and c.kind in ('mfma',) and o.wr & c.rd: need = max(need, 2)
                    if isv(o) and opc.startswith('v_permlane') and v(o.wr) & c.rd: need, why = max(need, 2), 'valu->permlane'
                    if isv(o) and 'dpp' in c.txt and v(o.wr) & c.rd: need, why = max(need, 2), 'valu->dpp'
                    if isv(o) and (opc.startswith('v_readfirstlane') or opc.startswith('v_readlane')) and v(o.wr) & c.rd: need, why = max(need, 1), 'valu->readlane'
                    if isv(o) and c.kind == 'vmem' and sg(o.wr) & c.rd: need, why = max(need, 5), 'valu sgpr->vmem'
                    if isv(o) and isv(c) and sg(o.wr) & c.rd: need, why = max(need, 2), 'valu sgpr->valu'
                    if isv(o) and c.kind in ('salu', 'br') and sg(o.wr) & (c.rd | ({'vcc'} if 'vcc' in c.txt else set())): need, why = max(need, 1), 'valu sgpr->salu(pad)'
                    if o.kind == 'salu' and 'm0' in o.wr and c.kind == 'vmem' and 'm0' in c.rd: need, why = max(need, 1), 'm0->dma'
                    if o.kind == 'vmem' and ('store' in o.txt) and ('x4' in o.txt or 'x3' in o.txt) and isv(c):
                        data = expand(o.txt.split(None, 1)[1].split(',')[0])
                        if data & c.wr: need, why = max(need, 2), 'store data war'
                    if isv(o) and 'exec' in o.wr and c.kind == 'mfma': need = max(need, 4)
                    if d < need:
                        errs.append(f"{why}: need {need} have {d}: [{o.txt}] -> [{c.txt}]")
        return sorted(set(errs))

    def text(self):
        out = []
        for c in self.code:
            out.append(c.txt if c.kind == 'label' else "    " + c.txt)
        return "\n".join(out) + "\n"


class Seg:
    def __init__(self, mf, budget=8):
        self.mf = [mk(m) for m in mf]; self.n = len(mf); self.budget = budget
        self.streams = []; self.pre = []; self.busy = set()
    def stream(self, items):
        st = []
        for it in items:
            x = it[0]; x = [mk(y) for y in x] if isinstance(x, (list, tuple)) else [mk(x)]
            want = it[1]
            lo = it[2] if len(it) > 2 and it[2] is not None else 0
            hi = it[3] if len(it) > 3 and it[3] is not None else self.n - 1
            st.append((x, max(0, lo), min(hi, self.n - 1), want))
        st2 = []; m = 0
        for x, lo, hi, w in st:
            m = max(m, lo); st2.append([x, m, hi, w])
        m = self.n - 1
        for it in reversed(st2):
            m = min(m, it[2]); it[2] = m
            assert it[1] <= it[2], f"empty window {it}"
        self.streams.append(st2)
    def first_use_gaps(self):
        seen = set(); prevw = set()
        for st in self.streams:
            for it in st:
                for c in it[0]:
                    if c.kind == 'lds': prevw |= c.wr
        last = set()
        for g, m in enumerate(self.mf):
            a = {r for r in m.ab if r[0] == 'a' and int(r[1:]) >= 128}
            new = a - last
            if new and g > 0: self.busy.add(g - 1)
            last = (last | a) if g % 16 else a
    def layout(self, beam=160, dev=0.02):
        n = self.n; S = self.streams; B = self.budget
        isvec = lambda c: c.kind in ('valu', 'trans', 'lds', 'vmem')
        info = [[(sum(c.cost for c in it[0] if isvec(c)), sum(1 for c in it[0] if not isvec(c) and c.kind != 'bar'),
                  any('m0' in c.wr for c in it[0]) , any(c.kind == 'bar' for c in it[0])) for it in st] for st in S]
        states = {tuple([0] * len(S)): (0.0, None)}
        hist = []
        for g in range(n):
            nxt = {}
            for ptr, (sc, back) in states.items():
                opts = [((), 0, 0, 0.0)]
                for si, st in enumerate(S):
                    new = []
                    p0 = ptr[si]
                    kmin = 0
                    while p0 + kmin < len(st) and st[p0 + kmin][2] <= g: kmin += 1
                    for (take, vc, scn, dv) in opts:
                        k = 0; v = vc; s_ = scn; d = dv
                        while True:
                            if k >= kmin: new.append((take + (k,), v, s_, d))
                            p = p0 + k
                            if p >= len(st) or st[p][1] > g: break
                            if k > 0 and info[si][p - 1][2] and k > kmin - 1: break
                            v += info[si][p][0]; s_ += info[si][p][1]; d += abs(g - st[p][3])
                            k += 1
                            if k > kmin and (v > B + 8 or s_ > 3): break
                    opts = new
                for (take, vc, scn, dv) in opts:
                    s_ = scn + (1 if g in self.busy else 0)
                    cost = max(0, vc + 4 * max(0, s_ - 1) - B)
                    q = tuple(a + b for a, b in zip(ptr, take))
                    t = sc + cost + dev * dv
                    if q not in nxt or t < nxt[q][0]: nxt[q] = (t, (ptr, take))
            def h(q):
                rem = sum(info[si][p][0] for si in range(len(S)) for p in range(q[si], len(S[si])))
                lag = sum(max(0.0, g + 1 - S[si][p][3]) for si in range(len(S)) for p in range(q[si], min(q[si] + 6, len(S[si]))))
                return max(0, rem - B * (n - 1 - g)) + dev * lag
            if len(nxt) > beam:
                keep = sorted(nxt, key=lambda q: nxt[q][0] + h(q))[:beam]
                nxt = {q: nxt[q] for q in keep}
            hist.append(nxt); states = nxt
        end = tuple(len(st) for st in S)
        assert end in states, "beam failed"
        self.score = states[end][0]
        takes = []; q = end
        for g in range(n - 1, -1, -1):
            ptr, take = hist[g][q][1]; takes.append((ptr, take)); q = ptr
        takes.reverse()
        out = list(self.pre); self.extra = 0
        for g in range(n):
            out.append(self.mf[g])
            ptr, take = takes[g]; xs = []
            for si, k in enumerate(take):
                for p in range(ptr[si], ptr[si] + k): xs += S[si][p][0]
            self.extra += max(0, sum(c.cost for c in xs if isvec(c)) - B)
            sync = ('bar', 'wait', 'waitv', 'waitl', 'waitlt')
            cls = lambda c: 2 if c.kind == 'nop' else 0 if not isvec(c) else 1 if c.kind in ('lds', 'vmem') else 2
            res = []
            for c in xs:
                i = len(res)
                while i > 0:
                    o = res[i - 1]
                    if cls(o) <= cls(c): break
                    if (o.wr & (c.rd | c.wr)) or (c.wr & o.rd): break
                    if (c.kind in sync and o.kind in ('lds', 'vmem')) or (o.kind in sync and c.kind in ('lds', 'vmem')): break
                    i -= 1
                res.insert(i, c)
            for i in range(len(res) - 1):
                if res[i].kind == 'salu' and 'm0' in res[i].wr and res[i + 1].kind == 'vmem' and 'm0' in res[i + 1].rd:
                    res.insert(i + 1, I("s_nop 0")); break
            out += res
        return out
```

```python
import sys, math, struct
from fw import *
from asmlib import whole_file, KNAME

def vr(a, n=1): return f"v{a}" if n == 1 else f"v[{a}:{a+n-1}]"
def ar(a, n=1): return f"a{a}" if n == 1 else f"a[{a}:{a+n-1}]"
def sr(a, n=1): return f"s{a}" if n == 1 else f"s[{a}:{a+n-1}]"
def f2u(x): return struct.unpack("<I", struct.pack("<f", x))[0]

MF = "v_mfma_f32_16x16x32_bf16"
O_BYTES = 2 * 120 * 128 * 1024
WOT_OFF = O_BYTES
WOT_BYTES = 2 * 128 * 36 * 1024
HUGE = 0x40000000
LDS_END = 0x28000

class Opt:
    nt = "nt"; xw = ""; chain = True; stamps = False; fallback = True
    ost = ""; ost2 = "sc0 sc1"; k2a = ""; k2b = ""; wol = "nt"
    pf = True; pfp = ""; pfc = True
    skip3 = True
    k2depth = 4
    verbose = False
OPT = Opt()

KA, VA, WA, XA_, DK, DV, DW, DX, OV = 2, 6, 14, 22, 26, 30, 32, 34, 36
PFX, PFW, PFD = 37, 38, 39
TMP = 40
WOA = 252
def G(pi): return 64 + 8 * pi
def Qr(qt, ks): return G(ks * 4 + qt)
def ACC(dt, qt): return G((dt >> 1) * 4 + qt) + 4 * (dt & 1)
def Sr(buf, kt, qt): return G(buf * 8 + kt * 4 + qt) + 4
def Pr(buf, qt): return 192 + buf * 16 + qt * 4
def NEG(qt): return 224 + 4 * qt
def Lr(qt, i): return 240 + 2 * qt + i
RCP = 248
def Oa(dt, qt): return (dt * 4 + qt) * 4
def XF(buf, u, qt): return 128 + buf * 32 + (u * 4 + qt) * 4
def FR(f): return 192 + 4 * f
SX, SW, SK, SV, SO = 4, 8, 12, 16, 20
sWAVE, sW4K, sW8K, sKo, sVo, sWit, sXit, sOit, sLOOP, sITEM, sT0, sT1, sC, sH, sT2, sT3 = range(24, 40)
SWO, SWT = 88, 92
sNX, sNWO, sWOs, sW9K = 96, 97, 98, 99
KS = [0, 16384, 32768, 49152]
VS = [65536 + 16384 * i for i in range(4)]
XBUF = [131072, 32768]
XTAG = ['XA', 'XB']

def dmaK(slot):
    out = [[I(f"s_add_u32 m0, s{sW4K}, {KS[slot]}")]]
    for j in range(4):
        x = [I(f"buffer_load_dwordx4 v{DK+j}, {sr(SK,4)}, s{sKo} offen offset:{1024*j} {OPT.nt} lds", tag=f"KS{slot}")]
        if j == 3: x.append(I(f"s_add_u32 s{sKo}, s{sKo}, 16384"))
        out.append(x)
    return out
def dmaV(slot):
    out = [[I(f"s_add_u32 m0, s{sW4K}, {VS[slot]}")]]
    for j in range(4):
        x = [I(f"buffer_load_dwordx4 v{DV+(j&1)}, {sr(SV,4)}, s{sVo} offen offset:{1024*j} {OPT.nt} lds", tag=f"VS{slot}")]
        if j == 3: x.append(I(f"s_add_u32 s{sVo}, s{sVo}, 16384"))
        out.append(x)
    return out
def wslot(s): return 1 + s % 3
def dmaW(s):
    slot = wslot(s)
    out = [[I(f"s_add_u32 m0, s{sW4K}, {VS[slot]}")]]
    for j in range(4):
        out.append([I(f"s_add_u32 s{sT0}, s{sWit}, {524288*s + 31744*j}"),
                    I(f"buffer_load_dwordx4 v{DW+(j>>1)}, {sr(SW,4)}, s{sT0} offen offset:{1024*j} {OPT.xw} lds", tag=f"VS{slot}")])
    return out
def dmaX(s, NQ, clamp=False):
    out = []; b = s & 1
    for j in range(2 * NQ):
        if j & 3 == 0:
            if clamp: out.append([I(f"s_add_u32 s{sT3}, s{sW8K}, {XBUF[b] + 1024*j}"), I(f"s_max_u32 m0, s{sT3}, s{sNX}")])
            else: out.append([I(f"s_add_u32 m0, s{sW8K}, {XBUF[b] + 1024*j}")])
        out.append([I(f"s_add_u32 s{sT1}, s{sXit}, {128*s + 9216*j - 1024*(j&3)}"),
                    I(f"buffer_load_dwordx4 v{DX+(j&1)}, {sr(SX,4)}, s{sT1} offen offset:{1024*(j&3)} {OPT.xw} lds", tag=XTAG[b])])
    return out
def dmaWO():
    out = []
    for j in range(9):
        if j & 3 == 0:
            out.append([I(f"s_add_u32 s{sT3}, s{sW9K}, {1024*j}"), I(f"s_max_u32 m0, s{sT3}, s{sNWO}")])
            out.append([I(f"s_add_u32 s{sT1}, s{sWOs}, {1024*j}"), I(f"buffer_load_dwordx4 v{WOA}, {sr(SWO,4)}, s{sT1} offen {OPT.wol} lds", tag="WO")])
        else:
            out.append([I(f"buffer_load_dwordx4 v{WOA}, {sr(SWO,4)}, s{sT1} offen offset:{1024*(j&3)} {OPT.wol} lds", tag="WO")])
    return out
def pfXW():
    return [[I(f"buffer_load_dword v{PFD}, v{PFX}, {sr(SX,4)}, s{sXit} offen {OPT.pfp}", tag="PF")],
            [I(f"buffer_load_dword v{PFD}, v{PFW}, {sr(SW,4)}, s{sWit} offen {OPT.pfp}", tag="PF")]]
def emit_plain(p, items):
    for x in items:
        p(x)
        if 'm0' in x[-1].wr: p("s_nop 0")

def place_dma(items, a, b, slack=2):
    nv = sum(1 for x in items if any(c.kind == 'vmem' for c in x))
    out = []; k = 0
    for x in items:
        w = a + (b - a) * k / max(1, nv - 1) if nv > 1 else a
        if any(c.kind == 'vmem' for c in x):
            out.append((x, w, math.floor(w) - slack, math.ceil(w) + slack)); k += 1
        else:
            out.append((x, w - 1, math.floor(w) - 1 - slack, math.ceil(w) + slack - 1))
    return out
def lin(n, a, b): return [a + (b - a) * i / max(1, n - 1) for i in range(n)]

def rdK(slotaddr, half, kts=(0, 1), base=None):
    return [I(f"ds_read_b128 {ar((FR(kt*4+ks) if base is None else base+4*(kt*4+ks)),4)}, v{KA+ks} offset:{slotaddr + half*8192 + kt*4096}") for kt in kts for ks in range(4)]
def rdV(slot, half, fbase=8):
    return [I(f"ds_read_b64_tr_b16 {ar(FR(fbase+dt)+2*z,2)}, v{VA+dt} offset:{slot*16384 + half*8192 + z*4096}") for dt in range(8) for z in range(2)]
def rdW(s, fs):
    return [I(f"ds_read_b64_tr_b16 {ar(FR(f)+2*z,2)}, v{WA+(f>>1)} offset:{wslot(s)*16384 + (f&1)*8192 + z*1024}") for f in fs for z in range(2)]
def rdX(s, NQ):
    b = s & 1
    return [I(f"ds_read_b128 {ar(XF(b,u,qt),4)}, v{XA_+2*b+u} offset:{qt*2048}", tag="xr") for qt in range(NQ) for u in range(2)]

def mfQK(buf, NQ, zero=False):
    out = []
    for kt in range(2):
        for qt in range(NQ):
            for ks in range(4):
                d = vr(Sr(buf, kt, qt), 4)
                c = d if ks else ("0" if zero else vr(NEG(qt), 4))
                out.append(f"{MF} {d}, {ar(FR(kt*4+ks),4)}, {vr(Qr(qt,ks),4)}, {c}")
    return out
def mfPV(buf, NQ, fbase=8):
    return [f"{MF} {ar(Oa(dt,qt),4)}, {ar(FR(fbase+dt),4)}, {vr(Pr(buf,qt),4)}, {ar(Oa(dt,qt),4)}" for dt in range(8) for qt in range(NQ)]
def smStream(buf, NQ):
    el = [(qt, kt, r) for qt in range(NQ) for kt in range(2) for r in range(4)]
    sreg = lambda e: Sr(buf, e[1], e[0]) + e[2]
    preg = lambda e: Pr(buf, e[0]) + e[1] * 2 + e[2] // 2
    vs = []
    def post(i):
        e = el[i]
        vs.append((I(f"v_add_f32 v{Lr(e[0], i&1)}, v{Lr(e[0], i&1)}, v{sreg(e)}"), e))
        if i & 1: vs.append((I(f"v_cvt_pk_bf16_f32 v{preg(e)}, v{sreg(e)-1}, v{sreg(e)}"), e))
    for i, e in enumerate(el):
        vs.append((I(f"v_exp_f32 v{sreg(e)}, v{sreg(e)}"), e))
        if i >= 2: post(i - 2)
    post(len(el) - 2); post(len(el) - 1)
    return vs
def sm_items(buf, NQ, a, b, lof, hif):
    vs = smStream(buf, NQ)
    tot = sum(i.cost for i, _ in vs); acc = 0; out = []
    for i, e in vs:
        out.append((i, a + (b - a) * acc / tot, lof(i, e), hif(i, e))); acc += i.cost
    return out

def barrier_items(*tags):
    x = []
    if tags: x.append(WaitV(*tags))
    x += [I("s_waitcnt lgkmcnt(0)"), I("s_barrier")]
    return x

def report(name, sg):
    if OPT.verbose: print(f"{name}: n={sg.n} extra={sg.extra}", file=sys.stderr)

def seg_iter(NQ, t, early, late, bar_tags, post_reads, post_kind='K'):
    L = 8 * NQ; H = L // 2
    s = Seg(mfQK(0, NQ) + mfPV(0, NQ) + mfQK(1, NQ) + mfPV(1, NQ))
    s.first_use_gaps()
    gb = 3 * L + 5
    lds = []
    for i, (x, w) in enumerate(zip(rdV(t & 3, 0), lin(16, 0, L - 3))): lds.append((x, w, 0, L + NQ * (i >> 1) - 7))
    for i, (x, w) in enumerate(zip(rdK(KS[(t + 1) & 3], 1), lin(8, L + 3, 2 * L - 7))): lds.append((x, w, ((i >> 2) + 1) * H, 2 * L + (i >> 2) * H - 7))
    for i, (x, w) in enumerate(zip(rdV(t & 3, 1), lin(16, 2 * L - 3, 3 * L - 3))): lds.append((x, w, L + NQ * (i >> 1) + NQ - 1, min(3 * L + NQ * (i >> 1) - 7, gb - 6)))
    lds.append((barrier_items(*bar_tags), gb, gb, gb))
    n = len(post_reads)
    for i, (x, w) in enumerate(zip(post_reads, lin(n, gb + 1, 4 * L - 5))):
        lds.append((x, w, gb, 4 * L - 6 if i < 4 else 4 * L - 1))
    s.stream(lds)
    nve = sum(1 for x in early if any(c.kind == 'vmem' for c in x))
    dm = place_dma(early, 3, min(3 + 8 * (nve - 1), gb - 4)) + (place_dma(late, gb + 3, 4 * L - 3) if late else [])
    dm = [(x, w, max(lo, gb) if i >= len(early) else lo, hi) for i, (x, w, lo, hi) in enumerate(dm)]
    s.stream(dm)
    iscvt = lambda i: i.txt.startswith("v_cvt")
    sm = sm_items(1, NQ, 0, 2 * L, lambda i, e: 0, lambda i, e: 2 * L + e[1] * H + 4 * e[0] - 1)
    sm += sm_items(0, NQ, 2 * L, 4 * L, lambda i, e: (L + 7 * NQ + e[0]) if iscvt(i) else L + 8, lambda i, e: 4 * L - 1)
    s.stream(sm)
    out = s.layout(); report(f"iter{t}/{NQ}", s)
    return out

def epilogue_stream(NQ, pol, pk=False, T=(TMP, TMP + 8)):
    out = []; k = 0
    for qt in range(NQ):
        for j in range(4):
            t = T[k % len(T)]; k += 1
            for i in range(8):
                out.append([I(f"v_accvgpr_read_b32 v{t+i}, a{Oa(2*j+(i>>2),qt)+(i&3)}")])
            for i in range(8):
                out.append([I(f"v_mul_f32 v{t+i}, v{RCP+qt}, v{t+i}")])
            for i in range(4):
                out.append([I(f"v_cvt_pk_bf16_f32 v{t+i}, v{t+2*i}, v{t+2*i+1}")])
            x = []
            if j == 0: x.append(I(f"s_add_u32 s{sT2}, s{sOit}, {qt*131072}"))
            x.append(I(f"buffer_store_dwordx4 {vr(t,4)}, v{OV}, {sr(SO,4)}, s{sT2} offen offset:{1024*j} {pol}", tag="OST"))
            out.append(x)
    return out
def zero_stream(NQ):
    out = [[I(f"v_accvgpr_write_b32 a{Oa(dt,qt)+i}, 0")] for dt in range(8) for qt in range(NQ) for i in range(4)]
    out += [[I(f"v_mov_b32 v{Lr(0,0)+i}, 0")] for i in range(2 * NQ)]
    return out
def conv_stream(NQ):
    gr = [(ks, qt) for ks in range(4) for qt in range(NQ)]
    out = []
    def sw(i, kind):
        g = Qr(gr[i][1], gr[i][0])
        return [f"v_permlane{kind}_swap_b32 v{g}, v{g+2}", f"v_permlane{kind}_swap_b32 v{g+1}, v{g+3}"]
    for i, (ks, qt) in enumerate(gr):
        g = Qr(qt, ks); lo = 4 * NQ * ks + 4 * qt + 3 + 3
        xs = [f"v_mul_f32 v{g+k}, s{sC}, v{g+k}" for k in range(8)]
        if i: xs += sw(i - 1, 32)
        xs += [f"v_cvt_pk_bf16_f32 v{g+k}, v{g+2*k}, v{g+2*k+1}" for k in range(4)]
        if i: xs += sw(i - 1, 16)
        out += [(I(x), lo) for x in xs]
    lo = out[-1][1]
    out += [(I(x), lo) for x in ["s_nop 1"] + sw(len(gr) - 1, 32) + ["s_nop 1"] + sw(len(gr) - 1, 16) + ["s_nop 1"]]
    return out

def seg_q(NQ, s, extra=None):
    b = s & 1; Lk = 4 * NQ; n = 4 * Lk
    mf = []
    for ks in range(4):
        for qt in range(NQ):
            for h in range(2):
                for u in range(2):
                    dt = 2 * ks + h
                    d = vr(ACC(dt, qt), 4)
                    c = "0" if (s == 0 and u == 0) else d
                    mf.append(f"{MF} {d}, {ar(FR(dt*2+u),4)}, {ar(XF(b,u,qt),4)}, {c}")
    sg = Seg(mf); sg.first_use_gaps()
    gb = int(0.66 * n)
    w1 = rdW(s, range(6, 16))
    need = lambda f: (f >> 2) * Lk + (f & 3)
    lds = []
    xr = rdX(s + 1, NQ) if s < 8 else []
    nx = len(xr)
    pos = lin(len(w1) + nx, 0, gb - 8)
    seq = [(x, 6 + (i >> 1)) for i, x in enumerate(w1[:8])] + [(x, None) for x in xr] + [(x, 10 + (i >> 1)) for i, x in enumerate(w1[8:])]
    firstx = True
    for (x, f), w in zip(seq, pos):
        if f is None:
            y = [WaitV(XTAG[(s + 1) & 1]), x] if firstx else [x]; firstx = False
            lds.append((y, w, 0, gb - 6))
        else:
            lds.append((x, w, 0, min(need(f) - 7, gb - 6)))
    xdone = pos[8 + nx - 1] + 6 if nx else 0
    if s < 8:
        lds.append((barrier_items(f"VS{wslot(s+1)}"), gb, gb, gb))
        for i, (x, w) in enumerate(zip(rdW(s + 1, range(0, 6)), lin(12, gb + 1, n - 3))): lds.append((x, w, gb, n - 6 if i < 8 else n - 1))
    else:
        lds.append((barrier_items("KS0"), gb, gb, gb))
        for i, (x, w) in enumerate(zip(rdK(KS[0], 0), lin(8, gb + 1, n - 3))): lds.append((x, w, gb, n - 1))
    sg.stream(lds)
    early = []; late = []
    if s == 0: early += dmaX(2, NQ)
    if s + 2 <= 8: early += dmaW(s + 2)
    if s == 7: early += dmaV(1) + dmaK(2)
    if s == 8: early += dmaV(2) + dmaK(3)
    if s + 3 <= 8: late = dmaX(s + 3, NQ)
    nv = lambda xs: sum(1 for x in xs if any(c.kind == 'vmem' for c in x))
    tot = nv(early) + nv(late)
    step = min((n - 3) / max(1, tot), 8)
    a2 = max(2 + step * nv(early), xdone + 1)
    dm = place_dma(early, 2, 2 + step * (nv(early) - 1), 1) if early else []
    if late:
        late[0] = [WaitLT("xr")] + late[0]
        l2 = place_dma(late, a2, n - 2, 1)
        dm += [(x, w, max(lo, math.ceil(xdone)), hi) for (x, w, lo, hi) in l2]
    if dm: sg.stream(dm)
    if s == 8:
        cv = conv_stream(NQ)
        sg.stream([(x, lo, min(lo, n - 1), None) for x, lo in cv])
    elif extra:
        sg.stream([(x, n * i / len(extra), None, None) for i, x in enumerate(extra)])
    out = sg.layout(); report(f"q{s}/{NQ}", sg)
    return out

def cross_g(op, r, t):
    return [f"v_mov_b32 v{t}, v{r}", "s_nop 1", f"v_permlane32_swap_b32 v{r}, v{t}", "s_nop 0", f"{op} v{r}, v{r}, v{t}",
            f"v_mov_b32 v{t}, v{r}", "s_nop 1", f"v_permlane16_swap_b32 v{r}, v{t}", "s_nop 0", f"{op} v{r}, v{r}, v{t}"]
def interleave(lists):
    out = []
    for i in range(max(len(l) for l in lists)):
        for l in lists:
            if i < len(l) and not l[i].startswith("s_nop"): out.append(l[i])
    return out

STAMP_OFF = 48 * 1024 * 1024
def stamp_init(p, ws_lo, ws_hi, wave_s, base):
    if not OPT.stamps: return
    p(f"""
    s_add_u32 s76, s{ws_lo}, {STAMP_OFF + base}
    s_addc_u32 s77, s{ws_hi}, 0
    s_mov_b32 s78, 0x100000
    s_mov_b32 s79, 0x20000
    s_lshl_b32 s80, s2, 2
    s_add_u32 s80, s80, s{wave_s}
    s_lshl_b32 s80, s80, 8
    """)
def stamp(p):
    if not OPT.stamps: return
    p("""
    s_memtime s[82:83]
    s_memrealtime s[84:85]
    s_waitcnt lgkmcnt(0)
    v_mov_b32 v254, s82
    v_mov_b32 v255, s84
    buffer_store_dwordx2 v[254:255], off, s[76:79], s80
    s_add_u32 s80, s80, 8
    """)

def k1_main(p, NQ, X):
    L = 8 * NQ; H = L // 2
    emit_plain(p, dmaX(0, NQ) + dmaW(0))
    if OPT.pf: emit_plain(p, pfXW())
    emit_plain(p, dmaX(1, NQ) + dmaW(1))
    if OPT.pfc:
        p(I(f"buffer_load_dword v{PFD}, v57, s[72:75], 0 offen", tag="PF"))
        p(I(f"buffer_load_dword v{PFD}, v57, s[72:75], s68 offen", tag="PF"))
        p(I(f"buffer_load_dword v{PFD}, v57, s[72:75], s69 offen", tag="PF"))
    emit_plain(p, dmaK(0) + dmaK(1) + dmaV(0))
    k1_addr(p)
    p(barrier_items('XA', 'VS1'))
    stamp(p)
    p(rdX(0, NQ)); p(rdW(0, range(0, 6)))
    p.label("K1_item" + X)
    ep = epilogue_stream(NQ, OPT.ost); zs = zero_stream(NQ)
    per = -(-len(ep) // 6); hz = len(zs) // 2
    for s in range(9):
        extra = ep[s * per:(s + 1) * per] if s < 6 else zs[:hz] if s == 6 else zs[hz:] if s == 7 else None
        p(seg_q(NQ, s, extra))
    stamp(p)
    p(f"""
    s_add_u32 s68, s{sH}, s{sITEM}
    s_lshl_b32 s{sOit}, s68, 12
    s_cmp_eq_u32 s{sITEM}, 0
    s_cselect_b32 s{sWit}, 256, {HUGE}
    s_cselect_b32 s{sXit}, 0, {HUGE}
    s_cselect_b32 s{sNX}, 0, {LDS_END}
    s_cselect_b32 s{sNWO}, {LDS_END}, 0
    s_cselect_b32 s{sWOs}, {HUGE}, s{sW9K}
    """)
    sg = Seg(mfQK(0, NQ, zero=True))
    sg.stream([(x, w, H, None) for x, w in zip(rdK(KS[0], 1, kts=(0,)), lin(4, H + 1, L - 4))])
    p(sg.layout())
    p(rdK(KS[0], 1, kts=(1,)))
    p("s_nop 4")
    mx = []
    for qt in range(NQ):
        s0, s1, m, t = Sr(0, 0, qt), Sr(0, 1, qt), TMP + qt, TMP + 4 + qt
        mx.append([f"v_max3_f32 v{m}, v{s0}, v{s0+1}, v{s0+2}", f"v_max3_f32 v{t}, v{s0+3}, v{s1}, v{s1+1}",
                   f"v_max3_f32 v{m}, v{m}, v{s1+2}, v{s1+3}", f"v_max_f32 v{m}, v{m}, v{t}"] + cross_g("v_max_f32", m, t))
    p(interleave(mx))
    for qt in range(NQ):
        for i in range(4): p(f"v_sub_f32 v{NEG(qt)+i}, 0, v{TMP+qt}")
    subs = [I(f"v_sub_f32 v{Sr(0,kt,qt)+i}, v{Sr(0,kt,qt)+i}, v{TMP+qt}") for qt in range(NQ) for kt in range(2) for i in range(4)]
    p(subs[:8])
    sg = Seg(mfQK(1, NQ))
    sg.stream([(barrier_items('KS1', 'VS0'), 6, 6, 6)] + [(x, w, H, None) for x, w in zip(rdK(KS[1], 0, kts=(0,)), lin(4, H + 1, L - 4))])
    sg.stream([(x, w, max(lo, 6), hi) for x, w, lo, hi in place_dma(dmaK(0), 9, L - 3)])
    sm = sm_items(0, NQ, 0, L, lambda i, e: 0, lambda i, e: None)
    mer = []; k = 8
    for it in sm:
        if it[0].kind == 'trans' and k < len(subs):
            mer.append((subs[k], it[1], 0, None)); k += 1
        mer.append(it)
    sg.stream(mer)
    p(sg.layout())
    p(rdK(KS[1], 0, kts=(1,)))
    stamp(p)
    p(f"s_mov_b32 s{sLOOP}, 3")
    p(".p2align 3")
    p.label("K1_loop" + X)
    for t in range(4):
        p(seg_iter(NQ, t, dmaV((t - 1) & 3), dmaK((t + 1) & 3), (f"KS{(t+2)&3}", f"VS{(t+1)&3}"), rdK(KS[(t + 2) & 3], 0)))
    stamp(p)
    p(f"s_sub_u32 s{sLOOP}, s{sLOOP}, 1\ns_cmp_lg_u32 s{sLOOP}, 0\ns_cbranch_scc1 K1_loop{X}")
    p(seg_iter(NQ, 12, dmaV(3) + (pfXW() if OPT.pf else []), dmaK(1), ("KS2", "VS1"), rdK(KS[2], 0)))
    p(seg_iter(NQ, 13, dmaV(0) + dmaX(0, NQ), [], ("KS3", "VS2", "KS0", "KS1"), rdK(KS[3], 0)))
    p(seg_iter(NQ, 14, dmaW(0) + dmaWO(), dmaX(1, NQ, clamp=True), ("VS3",), rdV(3, 0, fbase=0)))
    stamp(p)
    sg = Seg(mfPV(0, NQ, fbase=0))
    sg.stream([(x, w, 0, L - 6) for x, w in zip(rdV(3, 1), lin(16, 0, L - 10))])
    sg.stream(place_dma(dmaW(1), 3, L - 4))
    sg.stream(sm_items(1, NQ, 0, L, lambda i, e: 0, lambda i, e: None))
    p(sg.layout())
    sg = Seg(mfPV(1, NQ))
    lred = []
    for qt in range(NQ):
        m, t = RCP + qt, TMP + 4 + qt
        lred.append([f"v_add_f32 v{m}, v{Lr(qt,0)}, v{Lr(qt,1)}"] + cross_g("v_add_f32", m, t))
    lred = interleave(lred)
    chk = []
    if OPT.fallback:
        chk = [f"v_add_f32 v{TMP+1}, v{RCP}, v{RCP+1}", f"v_add_f32 v{TMP+1}, v{TMP+1}, v{RCP+2}"]
        if NQ == 4: chk.append(f"v_add_f32 v{TMP+1}, v{TMP+1}, v{RCP+3}")
        chk += [f"s_mov_b32 s68, {hex(f2u(2.0**30))}", f"v_cmp_ngt_f32 vcc, s68, v{TMP+1}"]
    rd = rdX(0, NQ) + rdW(0, range(0, 6))
    sg.stream([(barrier_items('XA', 'VS1', 'WO'), 2, 2, 2)] + [(x, w, 2, None) for x, w in zip(rd, lin(len(rd), 3, L - 2))])
    sg.stream([(x, w, None, L - 2) for x, w in zip(lred + chk, lin(len(lred + chk), 1, L - 6))])
    p(sg.layout())
    if OPT.fallback:
        p(f"s_cbranch_vccnz K1_slow{X}")
        p.label("K1_back" + X)
    for qt in range(NQ): p(f"v_rcp_f32 v{RCP+qt}, v{RCP+qt}")
    stamp(p)
    p(f"""
    s_add_u32 s{sITEM}, s{sITEM}, 1
    s_cmp_lt_u32 s{sITEM}, 2
    s_cbranch_scc1 K1_item{X}
    """)
    waves = (3,) if (NQ == 3) else (0, 1, 2) if OPT.skip3 else (0, 1, 2, 3)
    for w in waves:
        if w != waves[-1]: p(f"s_cmp_lg_u32 s{sWAVE}, {w}\ns_cbranch_scc1 K1_wo{w}")
        for i in range(9):
            nt = 9 * w + i
            off = (32 * (nt >> 1) + 4 * (nt & 1)) * 2
            p(f"ds_read_b64_tr_b16 {vr(64+4*i,2)}, v{WOA+1} offset:{off}\nds_read_b64_tr_b16 {vr(66+4*i,2)}, v{WOA+1} offset:{off+16*1152}")
        if w != waves[-1]:
            p(f"s_branch K1_wod{X}")
            p.label(f"K1_wo{w}")
    p.label("K1_wod" + X)
    ep = epilogue_stream(NQ, OPT.ost2, T=(TMP, TMP + 8, 104, 112))
    wst = [[I(f"s_add_u32 s71, s{sW9K}, {1024*i}"), I(f"buffer_store_dwordx4 {vr(64+4*i,4)}, v{WOA}, {sr(SWT,4)}, s71 offen {OPT.ost2}")] for i in range(9)]
    p("s_nop 2")
    for i, x in enumerate(ep):
        p(x)
        if i % 21 == 20 and wst: p(wst.pop(0))
    for x in wst: p(x)
    if OPT.stamps:
        stamp(p); p("s_waitcnt vmcnt(0)"); stamp(p)
    p("s_endpgm")
    if OPT.fallback: slow_path(p, NQ, X)

def k1_addr(p):
    a, b_ = 50, 51
    p(f"v_lshlrev_b32 v55, 8, v{b_}")
    for ks in range(4):
        p(f"v_xor_b32 v56, {4*ks}, v54\nv_lshl_add_u32 v{KA+ks}, v56, 4, v55")
    p(f"""
    v_lshrrev_b32 v56, 2, v{b_}
    v_and_b32 v57, 1, v{a}
    v_lshl_add_u32 v57, v57, 2, v56
    v_lshlrev_b32 v57, 1, v57
    v_bfe_u32 v58, v0, 1, 1
    v_xor_b32 v57, v57, v58
    v_and_b32 v58, 1, v0
    v_lshlrev_b32 v58, 3, v58
    v_lshl_add_u32 v58, v57, 4, v58
    v_lshl_add_u32 v59, v{a}, 2, v56
    v_mul_u32_u24 v61, 1152, v59
    v_lshl_add_u32 v59, v59, 8, v58
    v_add_u32 v59, 0x10000, v59
    v_lshlrev_b32 v60, 10, v{a}
    v_add_u32 v60, v60, v59
    v_and_b32 v62, 3, v0
    v_lshl_add_u32 v{WOA+1}, v62, 4, v61
    """)
    for dt in range(8):
        p(f"v_xor_b32 v{VA+dt}, {dt<<5}, v59\nv_xor_b32 v{WA+dt}, {dt<<5}, v60")
    p(f"""
    v_lshrrev_b32 v56, 1, v{b_}
    v_xor_b32 v56, v56, v{a}
    v_lshlrev_b32 v57, 7, v{b_}
    v_lshl_add_u32 v57, v1, 13, v57
    v_lshl_add_u32 v58, v56, 4, v57
    v_add_u32 v{XA_}, {XBUF[0]}, v58
    v_add_u32 v{XA_+2}, {XBUF[1]}, v58
    v_xor_b32 v{XA_+1}, 64, v{XA_}
    v_xor_b32 v{XA_+3}, 64, v{XA_+2}
    v_lshl_add_u32 v{OV}, v1, 19, v{WOA}
    """)

def kernel1():
    p = Prog()
    p(f"""
    s_load_dwordx16 s[40:55], s[0:1], 0
    s_load_dwordx4 s[56:59], s[0:1], 64
    s_load_dwordx2 s[60:61], s[0:1], 96
    s_cmp_ge_u32 s2, 256
    s_cbranch_scc0 K1_go
    s_endpgm
    K1_go:
    v_lshrrev_b32 v1, 6, v0
    v_and_b32 v0, 63, v0
    s_and_b32 s62, s2, 7
    v_readfirstlane_b32 s{sWAVE}, v1
    s_lshr_b32 s63, s2, 3
    s_lshr_b32 s64, s62, 2
    s_bfe_u32 s65, s62, 0x10001
    s_lshl_b32 s65, s65, 2
    s_and_b32 s66, s63, 3
    s_add_u32 s65, s65, s66
    s_and_b32 s66, s62, 1
    s_lshl_b32 s66, s66, 4
    s_lshr_b32 s67, s63, 2
    s_lshl_b32 s67, s67, 1
    s_add_u32 s{sH}, s66, s67
    s_lshl_b32 s{sW4K}, s{sWAVE}, 12
    s_lshl_b32 s{sW8K}, s{sWAVE}, 13
    s_mul_i32 s{sW9K}, s{sWAVE}, 9216
    s_mov_b32 s{sKo}, 0
    s_mov_b32 s{sVo}, 0
    s_mov_b32 s{sWit}, 0
    s_mov_b32 s{sXit}, 0
    s_mov_b32 s{sOit}, {HUGE}
    s_mov_b32 s{sITEM}, 0
    s_mov_b32 s{sC}, {hex(f2u(math.log2(math.e) / math.sqrt(128.0)))}
    """)
    a, b_, c, d = 50, 51, 52, 53
    p(f"""
    v_lshrrev_b32 v{a}, 4, v0
    v_and_b32 v{b_}, 15, v0
    v_lshlrev_b32 v{c}, 4, v1
    v_add_u32 v{c}, v{c}, v{a}
    v_lshrrev_b32 v{d}, 3, v0
    v_lshl_add_u32 v{d}, v1, 6, v{d}
    v_mul_u32_u24 v{d}, 1152, v{d}
    v_and_b32 v54, 7, v0
    v_xor_b32 v55, v54, v{a}
    v_lshl_add_u32 v{DX}, v55, 4, v{d}
    v_xor_b32 v55, 4, v55
    v_lshl_add_u32 v{DX+1}, v55, 4, v{d}
    v_lshlrev_b32 v54, 1, v{a}
    v_xor_b32 v54, v54, v{b_}
    v_lshlrev_b32 v55, 13, v{c}
    v_lshl_add_u32 v{DW}, v54, 4, v55
    v_xor_b32 v56, 8, v54
    v_lshl_add_u32 v{DW+1}, v56, 4, v55
    v_lshlrev_b32 v55, 8, v{c}
    v_lshl_add_u32 v{DV}, v54, 4, v55
    v_lshl_add_u32 v{DV+1}, v56, 4, v55
    v_xor_b32 v54, v{a}, v{b_}
    """)
    for j in range(4):
        p(f"v_xor_b32 v56, {4*j}, v54\nv_lshl_add_u32 v{DK+j}, v56, 4, v55")
    p(f"v_lshlrev_b32 v{WOA}, 4, v0")
    if OPT.pf:
        p(f"""
        v_cmp_lt_u32 vcc, 29, v0
        s_lshr_b32 s68, s63, 2
        s_mul_i32 s68, s68, 30
        v_cndmask_b32 v57, 0, 1, vcc
        v_mul_u32_u24 v58, 30, v57
        v_sub_u32 v58, v0, v58
        v_min_u32 v58, 29, v58
        v_add_u32 v58, s68, v58
        v_mul_u32_u24 v58, 1152, v58
        v_lshl_add_u32 v57, v1, 1, v57
        v_add_u32 v57, 1, v57
        v_lshl_add_u32 v{PFX}, v57, 7, v58
        v_lshrrev_b32 v57, 5, v0
        v_lshl_add_u32 v57, v1, 1, v57
        v_add_u32 v57, 1, v57
        s_and_b32 s68, s63, 3
        s_lshl_b32 s68, s68, 4
        v_bfe_u32 v58, v0, 1, 4
        v_add_u32 v58, s68, v58
        v_lshl_add_u32 v57, v57, 6, v58
        v_and_b32 v58, 1, v0
        v_lshlrev_b32 v58, 7, v58
        v_lshl_add_u32 v{PFW}, v57, 13, v58
        """)
    if OPT.pfc:
        p(f"""
        s_getpc_b64 s[72:73]
        K1_pc:
        s_mov_b32 s74, K2_end-K1_pc
        s_mov_b32 s75, 0x20000
        v_lshlrev_b32 v57, 7, v0
        v_lshl_add_u32 v57, v1, 13, v57
        """)
    p(f"""
    s_waitcnt lgkmcnt(0)
    s_cmp_eq_u32 s64, 0
    s_cselect_b32 s40, s40, s50
    s_cselect_b32 s41, s41, s51
    s_cselect_b32 s46, s46, s56
    s_cselect_b32 s47, s47, s57
    s_cselect_b32 s42, s42, s52
    s_cselect_b32 s43, s43, s53
    s_cselect_b32 s44, s44, s54
    s_cselect_b32 s45, s45, s55
    s_mul_i32 s68, s65, 276480
    s_add_u32 s{SX}, s40, s68
    s_addc_u32 s{SX+1}, s41, 0
    s_mov_b32 s{SX+2}, 276480
    s_mov_b32 s{SX+3}, 0x20000
    s_lshl_b32 s68, s{sH}, 8
    s_add_u32 s{SW}, s46, s68
    s_addc_u32 s{SW+1}, s47, 0
    s_sub_u32 s{SW+2}, {576*8192}, s68
    s_mov_b32 s{SW+3}, 0x20000
    s_lshl_b32 s68, s65, 5
    s_add_u32 s68, s68, s{sH}
    s_lshl_b32 s68, s68, 18
    s_add_u32 s{SK}, s42, s68
    s_addc_u32 s{SK+1}, s43, 0
    s_mov_b32 s{SK+2}, 524288
    s_mov_b32 s{SK+3}, 0x20000
    s_add_u32 s{SV}, s44, s68
    s_addc_u32 s{SV+1}, s45, 0
    s_mov_b32 s{SV+2}, 524288
    s_mov_b32 s{SV+3}, 0x20000
    s_mul_i32 s68, s64, 120
    s_mul_i32 s69, s65, 15
    s_add_u32 s68, s68, s69
    s_lshl_b32 s68, s68, 17
    s_add_u32 s{SO}, s60, s68
    s_addc_u32 s{SO+1}, s61, 0
    s_mov_b32 s{SO+2}, {15*131072}
    s_mov_b32 s{SO+3}, 0x20000
    s_lshr_b32 s68, s2, 7
    s_cmp_eq_u32 s68, 0
    s_cselect_b32 s{SWO}, s48, s58
    s_cselect_b32 s{SWO+1}, s49, s59
    s_and_b32 s69, s2, 127
    s_mul_i32 s69, s69, 36864
    s_add_u32 s{SWO}, s{SWO}, s69
    s_addc_u32 s{SWO+1}, s{SWO+1}, 0
    s_mov_b32 s{SWO+2}, 36864
    s_mov_b32 s{SWO+3}, 0x20000
    s_mul_i32 s69, s2, 36864
    s_add_u32 s69, s69, {WOT_OFF}
    s_add_u32 s{SWT}, s60, s69
    s_addc_u32 s{SWT+1}, s61, 0
    s_mov_b32 s{SWT+2}, 36864
    s_mov_b32 s{SWT+3}, 0x20000
    s_mov_b32 s68, 0x8000
    s_mov_b32 s69, 0x10000
    """)
    stamp_init(p, 60, 61, sWAVE, 0); stamp(p)
    if OPT.skip3:
        p(f"s_cmp_eq_u32 s{sWAVE}, 3\ns_cbranch_scc1 K1_w3")
    k1_main(p, 4, "")
    if OPT.skip3:
        p(".p2align 6")
        p.label("K1_w3")
        k1_main(p, 3, "c")
    plans = []
    for X in ([""] + (["c"] if OPT.skip3 else [])):
        base = {"K1_go": [True], "K1_w3": [X == "c"], "K1_loop" + X: [True, True, False] * 2, "K1_item" + X: [True, False]}
        plans.append((dict(base), None))
        b2 = dict(base); b2.update({"K1_wo0": [True], "K1_wo1": [True], "K1_wo2": [True]})
        if OPT.fallback: b2.update({"K1_slow" + X: [True, True], "K1_s1" + X: [True, False] * 2, "K1_s2" + X: [True, False] * 2})
        plans.append((b2, None))
    p.resolve(plans)
    return p, p.check(plans)

def slow_path(p, NQ, X):
    KF = [Sr(1, kt, ks) for kt in range(2) for ks in range(4)]
    VF = Pr(1, 0)
    ka, va = TMP + 8, TMP + 9
    p.label("K1_slow" + X)
    p(f"""
    s_waitcnt vmcnt(0)
    s_lshl_b32 s70, s{sITEM}, 18
    v_and_b32 v{ka}, 15, v0
    v_lshrrev_b32 v{va}, 4, v0
    v_lshlrev_b32 v{TMP+10}, 8, v{ka}
    v_lshlrev_b32 v{TMP+11}, 1, v{ka}
    v_lshl_add_u32 v{ka}, v{va}, 4, v{TMP+10}
    v_lshl_add_u32 v{va}, v{va}, 10, v{TMP+11}
    s_mov_b32 s71, 0
    """)
    for qt in range(NQ): p(f"v_mov_b32 v{TMP+qt}, 0xff800000")
    def loadK():
        p("s_add_u32 s86, s70, s71\ns_add_u32 s87, s86, 4096")
        for kt in range(2):
            for ks in range(4):
                p(f"buffer_load_dwordx4 {vr(KF[kt*4+ks],4)}, v{ka}, {sr(SK,4)}, s{86+kt} offen offset:{64*ks}")
        p("s_waitcnt vmcnt(0)")
    def qk(zero):
        for kt in range(2):
            for qt in range(NQ):
                for ks in range(4):
                    d = vr(Sr(0, kt, qt), 4); c = d if ks else ("0" if zero else vr(NEG(qt), 4))
                    p(f"{MF} {d}, {vr(KF[kt*4+ks],4)}, {vr(Qr(qt,ks),4)}, {c}")
        p("s_nop 7")
    p.label("K1_s1" + X)
    loadK(); qk(True)
    for qt in range(NQ):
        for kt in range(2):
            s0 = Sr(0, kt, qt)
            p(f"v_max3_f32 v{TMP+qt}, v{TMP+qt}, v{s0}, v{s0+1}\nv_max3_f32 v{TMP+qt}, v{TMP+qt}, v{s0+2}, v{s0+3}")
    p(f"s_add_u32 s71, s71, 8192\ns_cmp_lt_u32 s71, 262144\ns_cbranch_scc1 K1_s1{X}")
    for qt in range(NQ): p(cross_g("v_max_f32", TMP + qt, TMP + 4 + qt))
    for qt in range(NQ):
        for i in range(4): p(f"v_sub_f32 v{NEG(qt)+i}, 0, v{TMP+qt}")
        p(f"v_mov_b32 v{RCP+qt}, 0")
    for i in range(128): p(f"v_accvgpr_write_b32 a{i}, 0")
    p("s_mov_b32 s71, 0")
    p.label("K1_s2" + X)
    loadK(); qk(False)
    for qt in range(NQ):
        for kt in range(2):
            s0 = Sr(0, kt, qt)
            for i in range(4): p(f"v_exp_f32 v{s0+i}, v{s0+i}")
            p("s_nop 0")
            for i in range(4): p(f"v_add_f32 v{RCP+qt}, v{RCP+qt}, v{s0+i}")
            p(f"v_cvt_pk_bf16_f32 v{Pr(0,qt)+2*kt}, v{s0}, v{s0+1}\nv_cvt_pk_bf16_f32 v{Pr(0,qt)+2*kt+1}, v{s0+2}, v{s0+3}")
    for dt in range(8):
        for z in range(2):
            for i in range(4):
                p(f"buffer_load_ushort v{VF+4*z+i}, v{va}, {sr(SV,4)}, s{86+z} offen offset:{256*i + 32*dt}")
        p("s_waitcnt vmcnt(0)")
        for i in range(4):
            p(f"v_lshl_or_b32 v{VF+8+i}, v{VF+2*i+1}, 16, v{VF+2*i}")
        p("s_nop 1")
        for qt in range(NQ):
            p(f"{MF} {ar(Oa(dt,qt),4)}, {vr(VF+8,4)}, {vr(Pr(0,qt),4)}, {ar(Oa(dt,qt),4)}")
    p("s_nop 7")
    p(f"s_add_u32 s71, s71, 8192\ns_cmp_lt_u32 s71, 262144\ns_cbranch_scc1 K1_s2{X}")
    for qt in range(NQ): p(cross_g("v_add_f32", RCP + qt, TMP + 4 + qt))
    p(f"s_branch K1_back{X}")

def kernel2():
    depth = OPT.k2depth
    p = Prog()
    NB = depth + 1
    def AF(b, nt): return 8 + b * 48 + nt * 4
    def BF(b, qt): return 8 + b * 48 + 24 + qt * 4
    assert 8 + NB * 48 <= 254
    def AC(nt, qt): return (nt * 6 + qt) * 4
    p(f"""
    s_load_dwordx2 s[40:41], s[0:1], 80
    s_load_dwordx2 s[42:43], s[0:1], 96
    s_cmp_ge_u32 s2, 240
    s_cbranch_scc1 K2_end
    v_lshrrev_b32 v1, 6, v0
    v_and_b32 v0, 63, v0
    s_and_b32 s44, s2, 7
    v_readfirstlane_b32 s24, v1
    s_lshr_b32 s45, s2, 3
    s_lshr_b32 s46, s44, 2
    s_and_b32 s47, s44, 3
    s_mul_i32 s47, s47, 5
    s_mul_i32 s48, s45, 43
    s_lshr_b32 s48, s48, 8
    s_mul_i32 s49, s48, 6
    s_sub_u32 s49, s45, s49
    s_add_u32 s47, s47, s48
    v_lshlrev_b32 v2, 4, v0
    s_lshl_b32 s26, s24, 10
    s_mul_i32 s27, s24, 36864
    v_add_u32 v3, {131072}, v2
    v_add_u32 v4, {2*131072}, v2
    v_add_u32 v5, {3*131072}, v2
    v_add_u32 v6, {4*131072}, v2
    v_add_u32 v7, {5*131072}, v2
    s_mul_i32 s50, s46, 120
    s_mul_i32 s51, s47, 6
    s_add_u32 s50, s50, s51
    s_lshl_b32 s53, s50, 17
    s_mul_i32 s50, s46, {128*36864}
    s_mul_i32 s51, s49, 6144
    s_add_u32 s50, s50, s51
    s_add_u32 s52, s50, {WOT_OFF}
    s_sub_u32 s10, {WOT_BYTES}, s50
    s_mov_b32 s6, {6*131072}
    s_mov_b32 s7, 0x20000
    s_mov_b32 s11, 0x20000
    s_waitcnt lgkmcnt(0)
    s_add_u32 s4, s42, s53
    s_addc_u32 s5, s43, 0
    s_add_u32 s8, s42, s52
    s_addc_u32 s9, s43, 0
    """)
    stamp_init(p, 42, 43, 24, 0x80000); stamp(p)
    def loads(b):
        out = []
        for i in range(6):
            x = []
            if i == 4: x.append(I("s_add_u32 s28, s27, 4096"))
            x.append(I(f"buffer_load_dwordx4 {vr(AF(b,i),4)}, v2, s[8:11], s{27 if i < 4 else 28} offen offset:{1024*(i&3)} {OPT.k2a}", tag=f"B{b}"))
            out.append(x)
            x = [I(f"buffer_load_dwordx4 {vr(BF(b,i),4)}, v{2+i}, s[4:7], s26 offen {OPT.k2b}", tag=f"B{b}")]
            if i == 5: x += [I("s_add_u32 s26, s26, 4096"), I(f"s_add_u32 s27, s27, {4*36864}")]
            out.append(x)
        return out
    for b in range(depth):
        for x in loads(b): p(x)
    p(f"""
    s_mul_i32 s50, s47, {96*2304}
    s_mul_i32 s51, s46, 1152
    s_add_u32 s50, s50, s51
    s_mul_i32 s51, s49, 192
    s_add_u32 s50, s50, s51
    s_add_u32 s12, s40, s50
    s_addc_u32 s13, s41, 0
    s_sub_u32 s14, {1920*2304}, s50
    s_mov_b32 s15, 0x20000
    """)
    for i in range(144): p(f"v_accvgpr_write_b32 a{i}, 0")
    nsteps = 32
    def step(b, do_load):
        mf = [f"{MF} {ar(AC(nt,qt),4)}, {vr(AF(b,nt),4)}, {vr(BF(b,qt),4)}, {ar(AC(nt,qt),4)}" for nt in range(6) for qt in range(6)]
        sg = Seg(mf)
        sg.pre = [WaitV(f"B{b}")]
        if do_load: sg.stream(place_dma(loads((b + depth) % NB), 0, 33, 0))
        return sg.layout()
    nloop = (nsteps - depth) // NB
    rest = nsteps - nloop * NB
    if OPT.stamps:
        p(WaitV("B0")); stamp(p)
    p(f"s_mov_b32 s30, {nloop}")
    p(".p2align 3")
    p.label("K2_loop")
    for b in range(NB): p(step(b, True))
    stamp(p)
    p("s_sub_u32 s30, s30, 1\ns_cmp_lg_u32 s30, 0\ns_cbranch_scc1 K2_loop")
    for i in range(rest - 1):
        p(step(i % NB, nloop * NB + i + depth < nsteps))
    bl = (rest - 1) % NB
    free = [AF(b, 0) for b in range(NB) if b != bl]
    p(f"""
    s_mul_i32 s31, s24, 36864
    v_add_u32 v3, s31, v2
    v_and_b32 v4, 15, v0
    v_lshrrev_b32 v5, 4, v0
    v_mul_u32_u24 v4, 2304, v4
    v_lshl_add_u32 v4, v5, 4, v4
    """)
    stamp(p)
    for w in range(4):
        if w < 3: p(f"s_cmp_lg_u32 s24, {w}\ns_cbranch_scc1 K2_r{w}")
        own = [u for u in range(18) if u % 4 == w]
        oth = [u for u in range(18) if u % 4 != w]
        tiles = [(2 * (u % 3) + tau, u // 3) for u in oth + own for tau in range(2)]
        mf = [f"{MF} {ar(AC(nt,qt),4)}, {vr(AF(bl,nt),4)}, {vr(BF(bl,qt),4)}, {ar(AC(nt,qt),4)}" for nt, qt in tiles]
        sg = Seg(mf); sg.pre = [WaitV(f"B{bl}")]
        wr = [(I(f"ds_write_b128 v3, {ar(AC(nt,qt),4)} offset:{(nt*6+qt)*1024}"), i + 8, i + 8, None) for i, (nt, qt) in enumerate(tiles[:2 * len(oth)])]
        wr = [(x, w_, min(lo, 35), hi) for x, w_, lo, hi in wr]
        sg.stream(wr)
        others = [ww for ww in range(4) if ww != w]
        sg.stream([(I(f"v_add_u32 v{5+k}, {ww*36864}, v2"), 2 + k, None, None) for k, ww in enumerate(others)])
        p(sg.layout())
        regs = []
        r = 0
        pool = [fb + i for fb in free for i in range(0, 48, 8)]
        for k, u in enumerate(own):
            qt, m = u // 3, u % 3
            g0 = pool[4 * k]
            for tau in range(2):
                for i in range(4): p(f"v_accvgpr_read_b32 v{g0+4*tau+i}, a{AC(2*m+tau,qt)+i}")
        p("s_waitcnt lgkmcnt(0)\ns_barrier")
        for k, u in enumerate(own):
            qt, m = u // 3, u % 3
            for j in range(3):
                for tau in range(2):
                    p(f"ds_read_b128 {vr(pool[4*k+1+j]+4*tau,4)}, v{5+j} offset:{((2*m+tau)*6+qt)*1024}")
        for k, u in enumerate(own):
            qt, m = u // 3, u % 3
            g0, g1, g2, g3 = pool[4 * k:4 * k + 4]
            for i in range(8): p(f"v_add_f32 v{g0+i}, v{g0+i}, v{g1+i}")
            for i in range(8): p(f"v_add_f32 v{g2+i}, v{g2+i}, v{g3+i}")
            for i in range(8): p(f"v_add_f32 v{g0+i}, v{g0+i}, v{g2+i}")
            for i in range(4): p(f"v_cvt_pk_bf16_f32 v{g0+i}, v{g0+2*i}, v{g0+2*i+1}")
            p(f"s_mov_b32 s33, {qt*16*2304}")
            p(f"buffer_store_dwordx4 {vr(g0,4)}, v4, s[12:15], s33 offen offset:{64*m}")
        if OPT.stamps:
            stamp(p); p("s_waitcnt vmcnt(0)"); stamp(p)
        p("s_endpgm")
        if w < 3: p.label(f"K2_r{w}")
    p.label("K2_end")
    p("s_endpgm")
    lp = [True] * (nloop - 1) + [False]
    plans = [({"K2_loop": lp, **{f"K2_r{j}": [True] for j in range(w)}}, None) for w in range(4)]
    p.resolve(plans)
    return p, p.check(plans)

def build(out):
    k1, e1 = kernel1()
    k2, e2 = kernel2()
    for e in e1 + e2: print("HAZARD:", e, file=sys.stderr)
    txt = whole_file(["; @launch kernel=attn_kernel grid=(256,1,1) block=(256,1,1) lds=163840",
                      "; @launch kernel=oproj_kernel grid=(240,1,1) block=(256,1,1) lds=147456"],
                     [("attn_kernel", k1.text(), 512, 256, 102), ("oproj_kernel", k2.text(), 512, 256, 102)])
    open(out, "w").write(txt)
    return len(e1 + e2)

if __name__ == "__main__":
    out = sys.argv[1] if len(sys.argv) > 1 else "k.s"
    for a in sys.argv[2:]:
        k, v = a.split("=")
        setattr(OPT, k, eval(v) if v in ("True", "False") or v.lstrip('-').isdigit() else v.replace('+', ' '))
    sys.exit(1 if build(out) else 0)
```
